```python
import torch

def _softmax(x, axis=-1):
    return torch.softmax(x, dim=axis)
def _gelu(x):
    return torch.nn.functional.gelu(x, approximate="tanh")
def _silu(x):
    return torch.nn.functional.silu(x)
def _sigmoid(x):
    return torch.sigmoid(x)
def _layernorm(x, axis=-1, eps=1e-5):
    m = x.mean(dim=axis, keepdim=True)
    v = x.var(dim=axis, keepdim=True, unbiased=False)
    return (x - m) / torch.sqrt(v + eps)
def _scatter_add(tgt, idx, src, axis=0):
    return tgt.clone().index_add_(axis, idx, src)
def _segment_sum(src, seg, n):
    out = torch.zeros((n,) + src.shape[1:], dtype=src.dtype)
    return out.index_add_(0, seg, src)
def _pad(x, pw):
    flat = tuple(v for pair in reversed(pw) for v in pair)
    return torch.nn.functional.pad(x, flat)

kernel_name = 'interleave_layers__sliding_local_dilated__dense_activation_gelu__prompt'

def setup_inputs():

    _w = (lambda a: (lambda t: t.to(torch.bfloat16) if t.is_floating_point() else t)(torch.as_tensor(a)))
    def _A_setup():
        B, S, D = 1, 2048, 512
        return {
            "x": _w((lambda *s: torch.randn(*s, dtype=torch.bfloat16) * 0.05)(B, S, D)),
            "wqkv": _w((lambda *s: torch.randn(*s, dtype=torch.bfloat16) * 0.05)(D, 3 * D)),
            "wo": _w((lambda *s: torch.randn(*s, dtype=torch.bfloat16) * 0.05)(D, D)),
        }
    _A_in = _A_setup()

    def _B_setup():
        B, S, D, F = 1, 2048, 512, 1376
        return {
            "x": _w((lambda *s: torch.randn(*s, dtype=torch.bfloat16) * 0.05)(B, S, D)),
            "w1": _w((lambda *s: torch.randn(*s, dtype=torch.bfloat16) * 0.8)(D, F) * (D ** -0.5)),
            "b1": _w((lambda *s: torch.randn(*s, dtype=torch.bfloat16) * 0.8)(F) * 0.01),
            "w2": _w((lambda *s: torch.randn(*s, dtype=torch.bfloat16) * 0.8)(F, D) * (F ** -0.5)),
            "b2": _w((lambda *s: torch.randn(*s, dtype=torch.bfloat16) * 0.8)(D) * 0.01),
        }
    _B_in = _B_setup()

    return {
        "A_x": _A_in["x"],
        "A_wqkv": _A_in["wqkv"],
        "A_wo": _A_in["wo"],
        "B_x": _B_in["x"],
        "B_w1": _B_in["w1"],
        "B_b1": _B_in["b1"],
        "B_w2": _B_in["w2"],
        "B_b2": _B_in["b2"],
    }

def reference(A_x, A_wqkv, A_wo, B_x, B_w1, B_b1, B_w2, B_b2):
    def _A_ref(x, wqkv, wo):
        B, S, D = x.shape
        H = 32; Dh = D // H
        W, dil = 8, 2
        qkv = (lambda x, *d: x.permute(*d))((x @ wqkv).reshape(B, S, 3, H, Dh), 2, 0, 3, 1, 4)
        q, k, v = qkv[0], qkv[1], qkv[2]
        scale = Dh ** -0.5
        pos = torch.arange(S)
        off = torch.arange(W) * dil
        idx = pos[:, None] - off[None, :]
        mask = idx >= 0
        idx_c = torch.where(mask, idx, 0).reshape(-1)
        kg = k[:, :, idx_c, :].reshape(B, H, S, W, Dh)
        vg = v[:, :, idx_c, :].reshape(B, H, S, W, Dh)
        logits = torch.einsum("bhsd,bhswd->bhsw", q, kg) * scale
        logits = torch.where(mask[None, None, :, :], logits, -1e9)
        attn = _softmax(logits, axis=-1)
        o = torch.einsum("bhsw,bhswd->bhsd", attn, vg)
        return (lambda x, *d: x.permute(*d))(o, 0, 2, 1, 3).reshape(B, S, D) @ wo

    def _B_ref(x, w1, b1, w2, b2):
        h = torch.einsum("bsd,df->bsf", x, w1) + b1
        h = _gelu(h)
        return torch.einsum("bsf,fd->bsd", h, w2) + b2

    x = A_x
    x = x + _A_ref(_layernorm(x, axis=-1), A_wqkv, A_wo)
    x = x + _B_ref(_layernorm(x, axis=-1), B_w1, B_b1, B_w2, B_b2)
    x = x + _A_ref(_layernorm(x, axis=-1), A_wqkv, A_wo)
    x = x + _B_ref(_layernorm(x, axis=-1), B_w1, B_b1, B_w2, B_b2)
    return x
```

```python
import re

class Asm:
    def __init__(self):
        self.lines = []
        self.vm_n = 0
        self.vm_done = 0
        self.lg_n = 0
        self.lg_done = 0
        self.uid = 0
    def I(self, s):
        self.lines.append("    " + s)
    def C(self, s):
        self.lines.append("    ; " + s)
    def L(self, name):
        self.lines.append(name + ":")
    def label(self, base):
        self.uid += 1
        return f"L_{base}_{self.uid}"
    def vm(self, s):
        self.I(s); h = self.vm_n; self.vm_n += 1; return h
    def ds(self, s):
        self.I(s); h = self.lg_n; self.lg_n += 1; return h
    def wait(self, vm=None, lg=None):
        parts = []
        if vm is not None and vm >= self.vm_done:
            n = self.vm_n - vm - 1
            if n < 63:
                parts.append(f"vmcnt({n})")
            self.vm_done = vm + 1
        if lg is not None and lg >= self.lg_done:
            n = self.lg_n - lg - 1
            if n < 15:
                parts.append(f"lgkmcnt({n})")
            else:
                parts.append("lgkmcnt(15)")
                assert n <= 15, "lgkm distance too large"
            self.lg_done = lg + 1
        if parts:
            self.I("s_waitcnt " + " ".join(parts))
    def wait_all(self, vm=True, lg=True):
        parts = []
        if vm: parts.append("vmcnt(0)"); self.vm_done = self.vm_n
        if lg: parts.append("lgkmcnt(0)"); self.lg_done = self.lg_n
        self.I("s_waitcnt " + " ".join(parts))
    def text(self):
        return "\n".join(self.lines)

REG = re.compile(r"\b([vas])(\d+)\b|\b([vas])\[(\d+):(\d+)\]|\b(vcc|exec|m0)\b")
def regs_of(tok):
    out = set()
    for m in REG.finditer(tok):
        if m.group(1): out.add((m.group(1), int(m.group(2))))
        elif m.group(3):
            for i in range(int(m.group(4)), int(m.group(5)) + 1): out.add((m.group(3), i))
        else: out.add((m.group(6), 0))
    return out

TRANS = ("v_exp_f32", "v_log_f32", "v_rcp_f32", "v_rsq_f32", "v_sqrt_f32", "v_sin_f32", "v_cos_f32")
def split_ops(s):
    s = s.split(";")[0].strip()
    if not s: return None, []
    p = s.split(None, 1)
    mn = p[0]
    ops = []
    if len(p) > 1:
        depth = 0; cur = ""
        for ch in p[1]:
            if ch == "[": depth += 1
            if ch == "]": depth -= 1
            if ch == "," and depth == 0: ops.append(cur.strip()); cur = ""
            else: cur += ch
        ops.append(cur.strip())
    return mn, ops

class Ins:
    __slots__ = ("mn", "kind", "defs", "uses", "srcC", "srcAB", "text", "states", "passes", "dpp", "wide_store")
def classify(line):
    mn, ops = split_ops(line)
    if mn is None: return None
    i = Ins(); i.mn = mn; i.text = line; i.defs = set(); i.uses = set(); i.srcC = set(); i.srcAB = set()
    i.states = 1; i.passes = 0; i.dpp = False; i.wide_store = set()
    if mn == "s_nop":
        i.kind = "nop"; i.states = int(ops[0], 0) + 1; return i
    if mn.startswith("v_mfma"):
        i.kind = "mfma"; i.defs = regs_of(ops[0]); i.srcAB = regs_of(ops[1]) | regs_of(ops[2]); i.srcC = regs_of(ops[3].split()[0])
        i.uses = i.srcAB | i.srcC
        i.passes = 8 if "32x32" in mn else 4
        return i
    if mn.startswith("v_"):
        i.kind = "valu"
        last = ops[-1] if ops else ""
        i.dpp = ("row_" in line) or ("quad_perm" in line) or ("_dpp" in mn)
        if mn.startswith("v_cmp"):
            i.defs = regs_of(ops[0]); rest = ops[1:]
            if mn.startswith("v_cmpx"): i.defs.add(("exec", 0))
        elif mn.startswith("v_readfirstlane") or mn.startswith("v_readlane"):
            i.defs = regs_of(ops[0]); rest = ops[1:]
        elif "_co_" in mn:
            i.defs = regs_of(ops[0]) | regs_of(ops[1]); rest = ops[2:]
        elif mn.startswith("v_permlane") and "swap" in mn:
            i.defs = regs_of(ops[0]) | regs_of(ops[1]); rest = ops
        else:
            i.defs = regs_of(ops[0]); rest = ops[1:]
            if mn.startswith(("v_fmac", "v_dot2c", "v_pk_fmac", "v_writelane")) or i.dpp: rest = ops
        for o in rest: i.uses |= regs_of(o)
        if mn.startswith("v_cndmask") and len(ops) == 3: i.uses.add(("vcc", 0))
        return i
    if mn.startswith(("buffer_", "global_")):
        i.kind = "vmem"
        lds = " lds" in line or "load_lds" in mn
        if mn.startswith("buffer_load") and not lds:
            i.defs = regs_of(ops[0]); rest = ops[1:]
        elif mn.startswith("global_load") and not lds:
            i.defs = regs_of(ops[0]); rest = ops[1:]
        else:
            rest = ops
        for o in rest: i.uses |= regs_of(o)
        if lds: i.uses.add(("m0", 0)); i.kind = "vmem_lds"
        if "store" in mn and ("x3" in mn or "x4" in mn):
            i.wide_store = regs_of(ops[0] if mn.startswith("buffer_") else ops[1])
        return i
    if mn.startswith("ds_"):
        i.kind = "ds"
        if mn.startswith(("ds_read", "ds_bpermute", "ds_permute", "ds_swizzle")):
            i.defs = regs_of(ops[0]); rest = ops[1:]
        else: rest = ops
        for o in rest: i.uses |= regs_of(o)
        return i
    i.kind = "salu"
    if mn.startswith(("s_cmp", "s_cbranch", "s_branch", "s_waitcnt", "s_barrier", "s_endpgm", "s_sleep", "s_setprio", "s_bitcmp")):
        for o in ops: i.uses |= regs_of(o)
    else:
        if ops: i.defs = regs_of(ops[0])
        for o in ops[1:]: i.uses |= regs_of(o)
        if "saveexec" in mn: i.defs.add(("exec", 0))
    return i

def vg(regs): return {r for r in regs if r[0] in "va"}
def sg(regs): return {r for r in regs if r[0] == "s" or r[0] == "vcc"}

def need(p, c):
    n = 0
    if p.kind == "valu":
        w = vg(p.defs); sw = sg(p.defs)
        if c.kind == "mfma" and (w & c.uses): n = max(n, 2)
        if c.kind == "valu":
            if (c.mn.startswith("v_permlane") or c.dpp) and (w & c.uses): n = max(n, 2)
            if c.mn.startswith(("v_readfirstlane", "v_readlane")) and (w & c.uses): n = max(n, 1)
            if p.mn.startswith(TRANS) and (w & c.uses): n = max(n, 1)
            if sw & c.uses: n = max(n, 2)
            if ("op_sel" in p.text and not p.mn.startswith("v_pk")) and (w & (c.uses | c.defs)): n = max(n, 1)
            if ("exec", 0) in p.defs: n = max(n, 5 if c.dpp else 4 if c.mn.startswith(("v_readlane", "v_readfirstlane", "v_permlane")) else 0)
        if c.kind in ("vmem", "vmem_lds") and (sw & c.uses): n = max(n, 5)
        if c.kind == "mfma" and ("exec", 0) in p.defs: n = max(n, 4)
    elif p.kind == "mfma":
        D = p.defs; big = p.passes == 8
        if c.kind == "mfma":
            if D & c.srcAB: n = max(n, 12 if big else 8)
            if D & c.srcC:
                if not (c.srcC == D and c.passes == p.passes): n = max(n, 10 if big else 6)
        elif c.kind in ("valu", "vmem", "vmem_lds", "ds"):
            if D & (c.uses | c.defs): n = max(n, 12 if big else 8)
            if c.kind == "valu" and (p.srcC & c.defs): n = max(n, 7 if big else 3)
    elif p.kind == "salu":
        if ("m0", 0) in p.defs and c.kind == "vmem_lds": n = max(n, 1)
    elif p.kind == "vmem":
        if p.wide_store and (p.wide_store & c.defs): n = max(n, 2)
    return n

def fix_hazards(text, report=False):
    out = []; hist = []
    added = 0
    for line in text.split("\n"):
        st = line.strip()
        if not st or st.startswith(";") or st.endswith(":") or st.startswith("."):
            out.append(line); continue
        c = classify(line)
        if c is None:
            out.append(line); continue
        dist = 0; req = 0
        for p in reversed(hist):
            if dist >= 12: break
            n = need(p, c)
            if n > dist: req = max(req, n - dist)
            dist += p.states
        if req > 0 and c.kind != "nop":
            k = req
            while k > 0:
                t = min(k, 16); out.append(f"    s_nop {t-1}"); k -= t
                nop = Ins(); nop.kind = "nop"; nop.states = t; nop.defs = set(); nop.uses = set(); nop.mn = "s_nop"; nop.text = ""; nop.wide_store = set(); nop.dpp = False
                hist.append(nop)
            added += req
        out.append(line); hist.append(c)
        if len(hist) > 24: hist = hist[-24:]
    if report: print("hazard pass added", added, "wait states")
    return "\n".join(out)
```

```python
from asmk import *
from layout import *
from gen_p import srd

TAG = 0x100
L_HALO = 0x10000
L_SCR = 0x20000
L_STAT = 0x24000
L_TAB = 0x24400
LDS_BYTES = 0x25400
V_LANE, V_L16, V_LH, V_PAIR, V_W1A, V_W1B, V_POLL, V_STS, V_STV, V_TAB, V_TABV, V_KEEP, V_SEND, V_STO, V_STH, V_STL = range(16)
V_BIAS = 16
V_RES = 24
V_ACC = 40
V_AB = 96
V_T = 136
V_Y2 = 144
S_W, S_J, S_C, S_LAYER, S_SLOW, S_ACT, S_TAG = 8, 9, 10, 11, 12, 13, 14
S_WQ, S_WO, S_W1, S_W2 = 24, 25, 26, 27
S_PF = 28
S_KH, S_CH = 30, 31
S_FL = 32
S_B0 = 33
S_CS = 34
S_GB = 36
S_NB = 38
S_HST = 40
S_WQN = 43
S_SPIN = 44
S_TS = 64

def vr(b, n=4): return f"v[{b}:{b+n-1}]"
def ar(b, n=4): return f"a[{b}:{b+n-1}]"

class Main:
    def __init__(self, stamps=False, sched=None):
        self.a = Asm()
        self.stamps = stamps
        self.nts = 0
        self.wh = {}
        self.pfq = []
        self.pf_last = None
        self.live = set()
        self.sched = sched or {}

    def wreg(self, mat, i):
        if mat in ("WQ", "W1", "WQN"): return ar(4 * i)
        if mat == "WO": return ar(192 + 4 * i)
        if mat == "W2": return vr(V_Y2 + 4 * i) if i < 28 else ar(192 + 4 * (i - 28))
    def pf(self, n):
        a = self.a
        for _ in range(n):
            if not self.pfq: return
            mat, i = self.pfq.pop(0)
            base = {"WQ": S_WQ, "WQN": S_WQN, "WO": S_WO, "W1": S_W1, "W2": S_W2}[mat]
            per = 3 if mat in ("WQ", "WQN", "W1") else 4
            grp, k = divmod(i, per)
            step = 3072 if per == 3 else 4096
            if self.pf_last != (mat, grp):
                a.I(f"s_add_u32 s{S_PF}, s{base}, {grp*step}")
                self.pf_last = (mat, grp)
            vo = V_L16; imm = k * 1024
            if mat == "W1" and k > 0:
                vo = V_W1A if k == 1 else V_W1B; imm = 0
            assert self.wreg(mat, i) not in self.live, ("slot busy", mat, i)
            self.live.add(self.wreg(mat, i))
            h = a.vm(f"buffer_load_dwordx4 {self.wreg(mat, i)}, v{vo}, s[4:7], s{S_PF} offen" + (f" offset:{imm}" if imm else ""))
            self.wh[("WQ" if mat == "WQN" else mat, i)] = h
    def wwait(self, mat, idxs):
        hs = [self.wh.get((mat, i), -1) for i in idxs]
        assert all((mat, i) not in self.pfq for i in idxs), (mat, idxs)
        return max(hs)

    def ts(self):
        if self.stamps:
            self.a.I("s_memtime s[100:101]")
            self.a.I("s_waitcnt lgkmcnt(0)")
            self.a.I(f"s_mov_b32 s{S_TS+self.nts}, s100")
            self.a.lg_done = self.a.lg_n
            self.nts += 1

    def dual(self, fn):
        a = self.a
        ls, ld = a.label("slow"), a.label("sdone")
        a.I(f"s_cmp_lg_u32 s{S_SLOW}, 0"); a.I(f"s_cbranch_scc1 {ls}")
        n0 = a.vm_n
        fn("")
        n1 = a.vm_n
        a.I(f"s_branch {ld}"); a.L(ls)
        a.vm_n = n0
        fn(" sc1")
        assert a.vm_n == n1
        a.L(ld)
        a.I("s_nop 1")
        return n1 - 1

    def publish(self, kind, last, halo=False):
        a = self.a
        a.wait(vm=last)
        a.I("s_waitcnt lgkmcnt(0)"); a.lg_done = a.lg_n
        a.I("s_barrier")
        skip = a.label("nofl")
        a.I(f"s_cmp_lg_u32 s{S_W}, 0"); a.I(f"s_cbranch_scc1 {skip}")
        a.I(f"s_lshl_b32 s15, s{S_C}, 7"); a.I(f"s_lshl_b32 s16, s{S_J}, 2"); a.I("s_add_u32 s15, s15, s16"); a.I(f"s_add_u32 s15, s15, s{S_FL}")
        a.I(f"v_mov_b32 v{V_T}, s{S_TAG}"); a.I(f"v_mov_b32 v{V_T+1}, {kind*4096}")
        a.I("s_mov_b64 exec, 1")
        n0 = a.vm_n
        self.dual(lambda sc: a.vm(f"buffer_store_dword v{V_T}, v{V_T+1}, s[4:7], s15 offen{sc}"))
        if halo:
            a.I(f"v_mov_b32 v{V_T+1}, {F_HALO*4096}")
            a.vm(f"buffer_store_dword v{V_T}, v{V_T+1}, s[4:7], s15 offen sc1")
        a.I("s_mov_b64 exec, -1")
        a.L(skip)
        a.vm_n = n0

    def poll(self, kind, halo=False, first=False):
        a = self.a
        lp = a.label("poll")
        a.I(f"s_add_u32 s15, s{S_FL}, {kind*4096}")
        if halo:
            a.I(f"s_cmp_lg_u32 s{S_B0}, 0"); a.I("s_movk_i32 s17, 0xff"); a.I("s_cselect_b32 s16, s17, 0xffff"); a.I("s_mov_b32 s17, 0"); a.I("s_mov_b64 exec, s[16:17]")
        else:
            a.I("s_mov_b64 exec, 0xff")
        a.I(f"s_mov_b32 s{S_SPIN}, 0")
        a.L(lp)
        a.I(f"buffer_load_dword v{V_T}, v{V_POLL}, s[4:7], s15 offen sc1")
        a.I(f"s_add_u32 s{S_SPIN}, s{S_SPIN}, 1"); a.I(f"s_cmp_gt_u32 s{S_SPIN}, 0x40000"); a.I("s_cbranch_scc1 L_abort")
        a.I("s_waitcnt vmcnt(0)")
        a.I(f"v_and_b32 v{V_T+1}, -8, v{V_T}")
        a.I(f"v_cmp_ne_u32 vcc, {TAG:#x}, v{V_T+1}")
        a.I(f"s_cbranch_vccnz {lp}")
        a.vm_done = a.vm_n
        if first:
            a.I("s_mov_b64 exec, 0xff")
            a.I(f"v_cmp_ne_u32 vcc, s{S_TAG}, v{V_T}")
            a.I("s_cmp_lg_u64 vcc, 0"); a.I(f"s_cselect_b32 s{S_SLOW}, 1, 0")
        a.I("s_mov_b64 exec, -1")

    def dma4(self, soff, m0expr):
        a = self.a
        a.I(m0expr)
        h = None
        for q in range(4):
            h = a.vm(f"buffer_load_dwordx4 v{V_L16}, s[4:7], s{soff} offen" + (f" offset:{q*1024}" if q else "") + " sc1 lds")
        return h

    def stats_load(self, dst, voff, soff, stride):
        a = self.a
        h = None
        for q in range(4):
            h = a.vm(f"buffer_load_dwordx2 {vr(dst+2*q,2)}, v{voff}, s[4:7], s{soff} offen" + (f" offset:{q*stride}" if q else "") + " sc1")
        return h
    def stats_finish(self, d, ldsaddr_v, off):
        a = self.a
        a.I(f"v_pk_add_f32 {vr(d,2)}, {vr(d,2)}, {vr(d+2,2)}"); a.I(f"v_pk_add_f32 {vr(d+4,2)}, {vr(d+4,2)}, {vr(d+6,2)}")
        a.I(f"v_pk_add_f32 {vr(d,2)}, {vr(d,2)}, {vr(d+4,2)}")
        a.I(f"v_permlane32_swap_b32 v{d}, v{d+1}"); a.I(f"v_add_f32 v{d}, v{d}, v{d+1}")
        a.I(f"v_mov_b32 v{d+1}, v{d}"); a.I(f"v_permlane16_swap_b32 v{d}, v{d+1}"); a.I(f"v_add_f32 v{d}, v{d}, v{d+1}")
        a.I(f"v_mov_b32 v{d+1}, v{d}"); a.I(f"v_permlane32_swap_b32 v{d}, v{d+1}")
        a.I(f"v_mul_f32 v{d}, 0x3b000000, v{d}")
        a.I(f"v_mul_f32 v{d+1}, 0x3b000000, v{d+1}")
        a.I(f"v_fma_f32 v{d+1}, -v{d}, v{d}, v{d+1}")
        a.I(f"v_max_f32 v{d+1}, 0, v{d+1}")
        a.I(f"v_add_f32 v{d+1}, 0x3727c5ac, v{d+1}")
        a.I(f"v_rsq_f32 v{d+1}, v{d+1}")
        a.I(f"v_mul_f32 v{d}, v{d}, v{d+1}"); a.I(f"v_sub_f32 v{d}, 0, v{d}")
        a.ds(f"ds_write_b32 v{ldsaddr_v}, v{d+1} offset:{off}")
        a.ds(f"ds_write_b32 v{ldsaddr_v}, v{d} offset:{off+320}")

    def publish_x(self, xoff, stoff, kind, halo):
        a = self.a; R = V_RES; T = V_AB
        for rho in range(2):
            r = R + 8 * rho; t = T + 8 * rho
            a.I(f"v_pk_add_f32 {vr(t,2)}, {vr(r,2)}, {vr(r+2,2)}"); a.I(f"v_pk_add_f32 {vr(t+2,2)}, {vr(r+4,2)}, {vr(r+6,2)}")
            a.I(f"v_pk_mul_f32 {vr(t+4,2)}, {vr(r,2)}, {vr(r,2)}")
            a.I(f"v_pk_add_f32 {vr(t,2)}, {vr(t,2)}, {vr(t+2,2)}")
            a.I(f"v_pk_fma_f32 {vr(t+4,2)}, {vr(r+2,2)}, {vr(r+2,2)}, {vr(t+4,2)}")
            a.I(f"v_pk_fma_f32 {vr(t+4,2)}, {vr(r+4,2)}, {vr(r+4,2)}, {vr(t+4,2)}")
            a.I(f"v_pk_fma_f32 {vr(t+4,2)}, {vr(r+6,2)}, {vr(r+6,2)}, {vr(t+4,2)}")
            a.I(f"v_add_f32 v{t}, v{t}, v{t+1}"); a.I(f"v_add_f32 v{t+4}, v{t+4}, v{t+5}")
        P = T + 16
        for rho in range(2):
            for q in range(4):
                a.I(f"v_cvt_pk_bf16_f32 v{P+4*rho+q}, v{R+8*rho+2*q}, v{R+8*rho+2*q+1}")
        a.I(f"v_permlane32_swap_b32 v{T}, v{T+8}"); a.I(f"v_permlane32_swap_b32 v{T+4}, v{T+12}")
        a.I(f"v_add_f32 v{T}, v{T}, v{T+8}"); a.I(f"v_add_f32 v{T+4}, v{T+4}, v{T+12}")
        a.I(f"v_permlane16_swap_b32 v{T}, v{T+4}"); a.I(f"v_add_f32 v{T}, v{T}, v{T+4}")
        a.I(f"s_lshl_b32 s15, s{S_J}, 1"); a.I(f"s_add_u32 s15, s15, s{S_CH}")
        a.I(f"s_lshl_b32 s16, s{S_C}, 16"); a.I("s_lshl_b32 s17, s15, 12"); a.I("s_add_u32 s16, s16, s17")
        a.I(f"s_lshl_b32 s17, s{S_KH}, 11"); a.I("s_add_u32 s16, s16, s17"); a.I(f"s_add_u32 s16, s16, s{S_ACT}"); a.I(f"s_add_u32 s16, s16, {xoff:#x}")
        a.I(f"s_lshl_b32 s17, s{S_C}, 13"); a.I("s_lshl_b32 s18, s15, 9"); a.I("s_add_u32 s17, s17, s18")
        a.I(f"s_lshl_b32 s18, s{S_KH}, 8"); a.I("s_add_u32 s17, s17, s18"); a.I(f"s_add_u32 s17, s17, s{S_ACT}"); a.I(f"s_add_u32 s17, s17, {stoff:#x}")
        if halo:
            a.I(f"s_lshl_b32 s18, s{S_C}, 14"); a.I("s_lshl_b32 s19, s15, 10"); a.I("s_add_u32 s18, s18, s19"); a.I(f"s_add_u32 s18, s18, s{S_ACT}"); a.I(f"s_add_u32 s18, s18, {A_HALO:#x}")
            a.I(f"s_lshl_b32 s19, s{S_C}, 11"); a.I("s_lshl_b32 s15, s15, 7"); a.I("s_add_u32 s19, s19, s15"); a.I(f"s_add_u32 s19, s19, s{S_ACT}"); a.I(f"s_add_u32 s19, s19, {A_STH:#x}")
            a.I(f"s_cmp_eq_u32 s{S_KH}, 0"); a.I(f"s_cselect_b32 s18, {OOB:#x}, s18"); a.I(f"s_cselect_b32 s19, {OOB:#x}, s19")
            a.vm(f"buffer_store_dwordx4 {vr(P+4)}, v{V_L16}, s[4:7], s18 offen sc1")
            a.vm(f"buffer_store_dword v{T}, v{V_STH}, s[4:7], s19 offen sc1")
        def st(sc):
            a.vm(f"buffer_store_dwordx4 {vr(P)}, v{V_L16}, s[4:7], s16 offen{sc}")
            a.vm(f"buffer_store_dwordx4 {vr(P+4)}, v{V_L16}, s[4:7], s16 offen offset:1024{sc}")
            a.vm(f"buffer_store_dword v{T}, v{V_STO}, s[4:7], s17 offen{sc}")
        return self.dual(st)

    def kloop_n(self, mat, nt, groups, pfplan):
        a = self.a
        def reads(s):
            buf = V_AB + 20 * (s & 1); h = None
            for t in range(nt):
                if nt == 5 and t == 0: h = a.ds(f"ds_read_b128 {vr(buf)}, v{V_LH} offset:{s*1024}")
                else:
                    rt = t - (1 if nt == 5 else 0)
                    h = a.ds(f"ds_read_b128 {vr(buf+4*t)}, v{V_L16} offset:{s*4096+rt*1024}")
            return h
        def arrive(s):
            if s in groups:
                a.wait(vm=groups[s]); a.I("s_barrier")
        arrive(0); rh = reads(0)
        for s in range(16):
            nh = None
            if s + 1 < 16:
                if s + 1 in groups: a.wait(lg=rh)
                arrive(s + 1); nh = reads(s + 1)
            a.wait(lg=rh, vm=self.wwait(mat, [3*s, 3*s+1, 3*s+2]))
            buf = V_AB + 20 * (s & 1)
            ms = []
            if nt == 5:
                for t in range(5):
                    x = vr(buf + 4*t)
                    ms.append((V_ACC + 16 + 4*t, self.wreg(mat, 3*s+1), x))
                    ms.append((V_ACC + 36 + 4*t, x, self.wreg(mat, 3*s+2)))
                    if t > 0: ms.append((V_ACC + 4*(t-1), self.wreg(mat, 3*s), x))
            else:
                for t in range(4):
                    for u in range(3):
                        ms.append((V_ACC + 16*u + 4*t, self.wreg(mat, 3*s+u), vr(buf + 4*t)))
            n = pfplan.get(s, 0)
            for k, (d, A, B) in enumerate(ms):
                a.I(f"v_mfma_f32_16x16x32_bf16 {vr(d)}, {A}, {B}, {'0' if s == 0 else vr(d)}")
                if k >= 2 and k % 2 == 0 and n > 0: self.pf(1); n -= 1
            self.pf(n)
            for u in range(3): self.live.discard(self.wreg(mat, 3*s+u))
            rh = nh

    def kloop_k(self, mat, nsteps, groups, pfplan, late=None):
        a = self.a
        def reads(n):
            buf = V_AB + 16 * (n & 1); h = None
            for rho in range(4):
                h = a.ds(f"ds_read_b128 {vr(buf+4*rho)}, v{V_KEEP if rho < 2 else V_SEND} offset:{(n&15)*4096+(rho&1)*1024}")
            return h
        def arrive(s):
            if s in groups:
                a.wait(vm=groups[s]); a.I("s_barrier")
                if late and s == late[0]: late[1]()
        arrive(0); rh = reads(0)
        for s in range(nsteps):
            nh = None
            if s + 1 < nsteps:
                if s + 1 in groups: a.wait(lg=rh)
                arrive(s + 1); nh = reads(s + 1)
            a.wait(lg=rh, vm=self.wwait(mat, [2*s, 2*s+1]))
            buf = V_AB + 16 * (s & 1)
            n = pfplan.get(s, 0)
            for rho in range(4):
                for e in range(2):
                    d = V_ACC + 8*rho + 4*e
                    a.I(f"v_mfma_f32_16x16x32_bf16 {vr(d)}, {self.wreg(mat, 2*s+e)}, {vr(buf+4*rho)}, {'0' if s == 0 else vr(d)}")
                if n > 0: self.pf(1); n -= 1
            self.pf(n)
            for e in range(2): self.live.discard(self.wreg(mat, 2*s+e))
            rh = nh

    def reduce_add(self):
        a = self.a; T = V_T
        a.I(f"s_lshl_b32 s15, s{S_W}, 12"); a.I(f"s_add_u32 s15, s15, {L_SCR:#x}"); a.I("s_xor_b32 s16, s15, 0x2000")
        a.I(f"v_add_u32 v{T}, s15, v{V_L16}"); a.I(f"v_add_u32 v{T+1}, s16, v{V_L16}")
        for q in range(4): a.ds(f"ds_write_b128 v{T}, {vr(V_ACC+16+4*q)} offset:{q*1024}")
        for q in range(8): a.I(f"v_pk_add_f32 {vr(V_RES+2*q,2)}, {vr(V_RES+2*q,2)}, {vr(V_ACC+2*q,2)}")
        a.wait_all(vm=False); a.I("s_barrier")
        hs = [a.ds(f"ds_read_b128 {vr(V_AB+4*q)}, v{T+1} offset:{q*1024}") for q in range(4)]
        for q in range(4):
            a.wait(lg=hs[q])
            for k in range(2): a.I(f"v_pk_add_f32 {vr(V_RES+4*q+2*k,2)}, {vr(V_RES+4*q+2*k,2)}, {vr(V_AB+4*q+2*k,2)}")

    def attention(self, pfn):
        a = self.a
        Q, K, V = V_ACC, V_ACC + 16, V_ACC + 36
        B = V_AB
        QP, KP, VP = B, B + 8, B + 18
        ST = B + 28
        CSQ_, CSK_, TM = V_T, V_T + 4, B + 38
        hq = a.ds(f"ds_read_b128 {vr(CSQ_)}, v{V_TAB} offset:0"); hk = a.ds(f"ds_read_b128 {vr(CSK_)}, v{V_TAB} offset:64")
        hs = [a.ds(f"ds_read2_b32 {vr(ST+2*t,2)}, v{V_STS} offset0:{16*t} offset1:{80+16*t}") for t in range(5)]
        a.wait(lg=hs[4])
        def fold(acc, cs, st, dst):
            for k in range(2):
                a.I(f"v_pk_mul_f32 {vr(TM,2)}, {vr(cs+2*k,2)}, {vr(st,2)} op_sel:[0,1] op_sel_hi:[1,1]")
                a.I(f"v_pk_fma_f32 {vr(acc+2*k,2)}, {vr(acc+2*k,2)}, {vr(st,2)}, {vr(TM,2)} op_sel_hi:[1,0,1]")
            for k in range(2): a.I(f"v_cvt_pk_bf16_f32 v{dst+k}, v{acc+2*k}, v{acc+2*k+1}")
        for t in range(5): fold(K + 4*t, CSK_, ST + 2*t, KP + 2*t)
        for t in range(4): fold(Q + 4*t, CSQ_, ST + 2*(t+1), QP + 2*t)
        self.pf(pfn[0])
        S = Q
        for rt in range(4):
            a.I(f"v_mfma_f32_16x16x16_bf16 {vr(S+8*rt)}, {vr(KP+2*rt,2)}, {vr(QP+2*rt,2)}, 0")
            a.I(f"v_mfma_f32_16x16x16_bf16 {vr(S+8*rt+4)}, {vr(KP+2*rt+2,2)}, {vr(QP+2*rt,2)}, 0")
        hc = a.ds(f"ds_read_b32 v{ST+8}, v{V_TABV} offset:128")
        bufs = [(ST, ST + 4), (V_T, V_T + 4)]
        def vread(t):
            rs, nm = bufs[t & 1]
            a.ds(f"ds_read_b128 {vr(rs)}, v{V_STV} offset:{64*t}")
            return a.ds(f"ds_read_b128 {vr(nm)}, v{V_STV} offset:{320+64*t}")
        h = vread(0)
        for t in range(5):
            nh = vread(t + 1) if t < 4 else None
            a.wait(lg=h)
            rs, nm = bufs[t & 1]
            for k in range(2):
                a.I(f"v_pk_mul_f32 {vr(nm+2*k,2)}, {vr(nm+2*k,2)}, {vr(ST+8,2)} op_sel_hi:[1,0]")
                a.I(f"v_pk_fma_f32 {vr(V+4*t+2*k,2)}, {vr(V+4*t+2*k,2)}, {vr(rs+2*k,2)}, {vr(nm+2*k,2)}")
            for k in range(2): a.I(f"v_cvt_pk_bf16_f32 v{VP+2*t+k}, v{V+4*t+2*k}, v{V+4*t+2*k+1}")
            h = nh
        self.pf(pfn[1])
        W = V
        for r in range(4): a.I(f"v_min_f32 v{W+r}, s{S_NB}, v{V_BIAS+r}")
        for rt in range(4):
            for k in range(4):
                bias = (W + 2*k) if (rt == 0 and k < 2) else (V_BIAS + 2*k)
                a.I(f"v_pk_fma_f32 {vr(S+8*rt+2*k,2)}, {vr(S+8*rt+2*k,2)}, s[{S_CS}:{S_CS+1}], {vr(bias,2)}")
        M = W + 4
        for rt in range(4):
            s = S + 8*rt; m = M + 2*rt
            a.I(f"v_max3_f32 v{m}, v{s}, v{s+1}, v{s+2}"); a.I(f"v_max3_f32 v{m+1}, v{s+3}, v{s+4}, v{s+5}")
            a.I(f"v_max3_f32 v{m}, v{m}, v{s+6}, v{s+7}"); a.I(f"v_max_f32 v{m}, v{m}, v{m+1}")
        a.I(f"v_permlane32_swap_b32 v{M}, v{M+2}"); a.I(f"v_permlane32_swap_b32 v{M+4}, v{M+6}")
        a.I(f"v_max_f32 v{M}, v{M}, v{M+2}"); a.I(f"v_max_f32 v{M+4}, v{M+4}, v{M+6}")
        a.I(f"v_permlane16_swap_b32 v{M}, v{M+4}"); a.I(f"v_max_f32 v{M}, v{M}, v{M+4}")
        a.I(f"v_mov_b32 v{M+4}, v{M}"); a.I(f"v_permlane16_swap_b32 v{M}, v{M+4}")
        a.I(f"v_mov_b32 v{M+2}, v{M}"); a.I(f"v_mov_b32 v{M+6}, v{M+4}")
        a.I(f"v_permlane32_swap_b32 v{M}, v{M+2}"); a.I(f"v_permlane32_swap_b32 v{M+4}, v{M+6}")
        ONE = W + 12
        for r in range(4): a.I(f"v_mov_b32 v{ONE+r}, 0x3f803f80")
        PP = QP
        for rt in range(4):
            s = S + 8*rt
            for k in range(4):
                a.I(f"v_pk_add_f32 {vr(s+2*k,2)}, {vr(s+2*k,2)}, {vr(M+2*rt,2)} op_sel_hi:[1,0] neg_lo:[0,1] neg_hi:[0,1]")
            for k in range(8): a.I(f"v_exp_f32 v{s+k}, v{s+k}")
            for k in range(4): a.I(f"v_cvt_pk_bf16_f32 v{PP+4*rt+k}, v{s+2*k}, v{s+2*k+1}")
            if rt == 1: self.pf(pfn[2])
        for rt in range(4):
            a.I(f"v_mfma_f32_16x16x32_bf16 {vr(S+8*rt)}, {vr(VP+2*rt)}, {vr(PP+4*rt)}, 0")
            a.I(f"v_mfma_f32_16x16x32_bf16 {vr(S+8*rt+4)}, {vr(ONE)}, {vr(PP+4*rt)}, 0")
        OP = V_T
        for rt in range(4): a.I(f"v_rcp_f32 v{S+8*rt+4}, v{S+8*rt+4}")
        for rt in range(4):
            s = S + 8*rt
            for k in range(2): a.I(f"v_pk_mul_f32 {vr(s+2*k,2)}, {vr(s+2*k,2)}, {vr(s+4,2)} op_sel_hi:[1,0]")
            for k in range(2): a.I(f"v_cvt_pk_bf16_f32 v{OP+2*rt+k}, v{s+2*k}, v{s+2*k+1}")
        for p in range(2):
            for k in range(2): a.I(f"v_permlane32_swap_b32 v{OP+4*p+k}, v{OP+4*p+2+k}")
        a.I(f"s_lshl_b32 s15, s{S_J}, 1"); a.I(f"s_add_u32 s15, s15, s{S_KH}"); a.I("s_lshl_b32 s15, s15, 12")
        a.I(f"s_lshl_b32 s16, s{S_CH}, 9"); a.I("s_add_u32 s15, s15, s16"); a.I(f"s_lshl_b32 s16, s{S_C}, 16"); a.I("s_add_u32 s15, s15, s16")
        a.I(f"s_add_u32 s15, s15, s{S_ACT}"); a.I(f"s_add_u32 s15, s15, {A_O:#x}")
        def st(sc):
            a.vm(f"buffer_store_dwordx4 {vr(OP)}, v{V_PAIR}, s[4:7], s15 offen{sc}")
            a.vm(f"buffer_store_dwordx4 {vr(OP+4)}, v{V_PAIR}, s[4:7], s15 offen offset:2048{sc}")
        return self.dual(st)

    def gelu(self, pfn):
        a = self.a
        B = V_AB
        ST = B
        CS, BI = B + 8, B + 12
        CA = B + 24
        U2 = B + 26
        E = B + 30
        OP = V_T
        hs = [a.ds(f"ds_read2_b32 {vr(ST+2*t,2)}, v{V_STS} offset0:{16*(t+1)} offset1:{80+16*(t+1)}") for t in range(4)]
        def tab(u):
            o = 8 * (u & 1)
            a.ds(f"ds_read_b128 {vr(CS+o)}, v{V_TAB} offset:{192+64*u}")
            return a.ds(f"ds_read_b128 {vr(BI+o)}, v{V_TAB} offset:{384+64*u}")
        h = tab(0)
        a.I(f"v_mov_b32 v{CA}, 0xc0135761"); a.I(f"v_mov_b32 v{CA+1}, 1.0")
        last = None
        for u in range(3):
            nh = tab(u + 1) if u < 2 else None
            a.wait(lg=h)
            o = 8 * (u & 1)
            for rt in range(4):
                x = V_ACC + 16*u + 4*rt; st = ST + 2*rt
                for k in range(2):
                    a.I(f"v_pk_fma_f32 {vr(U2+2*k,2)}, {vr(CS+o+2*k,2)}, {vr(st,2)}, {vr(BI+o+2*k,2)} op_sel:[0,1,0] op_sel_hi:[1,1,1]")
                for k in range(2):
                    a.I(f"v_pk_fma_f32 {vr(x+2*k,2)}, {vr(x+2*k,2)}, {vr(st,2)}, {vr(U2+2*k,2)} op_sel_hi:[1,0,1]")
                for k in range(2): a.I(f"v_pk_mul_f32 {vr(U2+2*k,2)}, {vr(x+2*k,2)}, {vr(x+2*k,2)}")
                for k in range(2): a.I(f"v_pk_fma_f32 {vr(U2+2*k,2)}, {vr(U2+2*k,2)}, s[{S_GB}:{S_GB+1}], {vr(CA,2)} op_sel_hi:[1,1,0]")
                for k in range(2): a.I(f"v_pk_mul_f32 {vr(U2+2*k,2)}, {vr(U2+2*k,2)}, {vr(x+2*k,2)}")
                for k in range(4): a.I(f"v_exp_f32 v{E+k}, v{U2+k}")
                for k in range(2): a.I(f"v_pk_add_f32 {vr(E+2*k,2)}, {vr(E+2*k,2)}, {vr(CA,2)} op_sel:[0,1] op_sel_hi:[1,1]")
                for k in range(4): a.I(f"v_rcp_f32 v{E+k}, v{E+k}")
                for k in range(2): a.I(f"v_pk_mul_f32 {vr(x+2*k,2)}, {vr(x+2*k,2)}, {vr(E+2*k,2)}")
                for k in range(2): a.I(f"v_cvt_pk_bf16_f32 v{V_ACC+16*u+2*rt+k}, v{x+2*k}, v{x+2*k+1}")
                if rt & 1: self.pf(pfn)
            P = V_ACC + 16*u
            for p in range(2):
                for k in range(2): a.I(f"v_permlane32_swap_b32 v{P+4*p+k}, v{P+4*p+2+k}")
            a.I(f"s_add_u32 s15, s{S_HST+u}, s{S_ACT}")
            def st_(sc):
                a.vm(f"buffer_store_dwordx4 {vr(P)}, v{V_PAIR}, s[4:7], s15 offen{sc}")
                a.vm(f"buffer_store_dwordx4 {vr(P+4)}, v{V_PAIR}, s[4:7], s15 offen offset:2048{sc}")
            last = self.dual(st_)
            h = nh
        return last

    def gen(self):
        a = self.a
        sc = self.sched
        a.I("s_cmp_ge_u32 s2, 256"); a.I("s_cbranch_scc1 L_abort")
        if self.stamps:
            a.I("s_memrealtime s[96:97]")
            for k in range(32): a.I(f"s_mov_b32 s{S_TS+k}, 0")
        a.I(f"s_load_dwordx2 s[16:17], s[0:1], {KA['x']}")
        a.I(f"s_load_dwordx2 s[18:19], s[0:1], {KA['ws']}")
        a.I(f"s_load_dwordx2 s[46:47], s[0:1], {KA['b1']}")
        a.I(f"s_load_dwordx4 s[48:51], s[0:1], {KA['b2']}")
        a.I("v_lshrrev_b32 v1, 6, v0"); a.I("v_and_b32 v0, 63, v0")
        a.I(f"v_readfirstlane_b32 s{S_W}, v1")
        a.I(f"s_lshr_b32 s15, s2, 3"); a.I(f"s_and_b32 s{S_J}, s15, 7"); a.I("s_lshr_b32 s15, s15, 3")
        a.I(f"s_and_b32 s{S_C}, s2, 7"); a.I(f"s_lshl_b32 s{S_C}, s{S_C}, 2"); a.I(f"s_add_u32 s{S_C}, s{S_C}, s15")
        a.I(f"s_lshr_b32 s{S_KH}, s{S_W}, 1"); a.I(f"s_and_b32 s{S_CH}, s{S_W}, 1")
        a.I(f"s_getreg_b32 s{S_TAG}, hwreg(HW_REG_XCC_ID, 0, 3)"); a.I(f"s_or_b32 s{S_TAG}, s{S_TAG}, {TAG:#x}")
        a.I(f"s_mov_b32 s{S_LAYER}, 0"); a.I(f"s_mov_b32 s{S_SLOW}, 1"); a.I(f"s_mov_b32 s{S_ACT}, {ACT:#x}"); a.I(f"s_mov_b32 s{S_FL}, 0")
        a.I(f"s_and_b32 s15, s{S_C}, 15"); a.I("s_cmp_eq_u32 s15, 0"); a.I(f"s_cselect_b32 s{S_B0}, 1, 0")
        a.I(f"s_cselect_b32 s{S_NB}, 0xf149f2ca, 0")
        a.I(f"s_mov_b32 s{S_CS}, 0x3eb8aa3b"); a.I(f"s_mov_b32 s{S_CS+1}, 0x3eb8aa3b")
        a.I(f"s_mov_b32 s{S_GB}, 0xbdd2d3e8"); a.I(f"s_mov_b32 s{S_GB+1}, 0xbdd2d3e8")
        a.I(f"s_lshl_b32 s15, s{S_J}, 2"); a.I(f"s_add_u32 s15, s15, s{S_W}")
        a.I(f"s_mul_i32 s{S_WQ}, s15, {48*1024}"); a.I(f"s_add_u32 s{S_W1}, s{S_WQ}, {W1:#x}"); a.I(f"s_add_u32 s{S_WQ}, s{S_WQ}, {WQ:#x}")
        a.I(f"s_lshl_b32 s{S_WO}, s15, 14"); a.I(f"s_add_u32 s{S_WO}, s{S_WO}, {WO:#x}")
        a.I(f"s_mul_i32 s{S_W2}, s15, {44*1024}"); a.I(f"s_add_u32 s{S_W2}, s{S_W2}, {W2:#x}")
        a.I(f"s_mov_b32 s{S_WQN}, s{S_WQ}")
        a.I("s_mul_i32 s52, s15, 192")
        a.I(f"v_lshlrev_b32 v{V_L16}, 4, v0")
        a.I(f"v_add_u32 v{V_LH}, {L_HALO:#x}, v{V_L16}")
        m, g = V_T + 6, V_T + 7
        a.I(f"v_and_b32 v{m}, 15, v0"); a.I(f"v_lshrrev_b32 v{g}, 4, v0")
        a.I("s_waitcnt lgkmcnt(0)")
        srd(a, 4, 18, 19, WS_SIZE)
        srd(a, 20, 16, 17, 2048*1024)
        a.I(f"s_and_b32 s15, s{S_C}, 15"); a.I("s_lshl_b32 s15, s15, 1"); a.I(f"s_add_u32 s15, s15, s{S_KH}"); a.I("s_lshl_b32 s15, s15, 16")
        a.I(f"s_lshr_b32 s16, s{S_C}, 4"); a.I("s_lshl_b32 s16, s16, 10"); a.I("s_add_u32 s15, s15, s16")
        a.I(f"s_lshl_b32 s16, s{S_J}, 7"); a.I("s_add_u32 s15, s15, s16"); a.I(f"s_lshl_b32 s16, s{S_CH}, 6"); a.I("s_add_u32 s53, s15, s16")
        a.I("s_add_u32 s54, s53, 32768")
        a.I(f"v_lshlrev_b32 v{V_STL}, 11, v{m}"); a.I(f"v_lshl_add_u32 v{V_STL}, v{g}, 4, v{V_STL}")
        hx0 = a.vm(f"buffer_load_dwordx4 {vr(V_AB)}, v{V_STL}, s[20:23], s53 offen")
        hx1 = a.vm(f"buffer_load_dwordx4 {vr(V_AB+4)}, v{V_STL}, s[20:23], s54 offen")
        TB = V_ACC
        a.I(f"v_lshlrev_b32 v{V_T}, 4, v{g}")
        a.I(f"s_add_u32 s15, s52, {CSQ:#x}")
        a.I(f"s_add_u32 s16, s52, {CS1:#x}")
        ht = []
        for kq in range(4):
            for u in range(3):
                a.vm(f"buffer_load_dwordx4 {vr(V_Y2+48*0+12*kq+4*u)}, v{V_T}, s[4:7], s15 offen offset:{64*u}")
                ht.append(a.vm(f"buffer_load_dwordx4 {vr(V_Y2+48+12*kq+4*u)}, v{V_T}, s[4:7], s16 offen offset:{64*u}"))
            if kq < 3: a.I("s_add_u32 s15, s15, 6144"); a.I("s_add_u32 s16, s16, 6144")
        a.I(f"s_mul_i32 s15, s{S_J}, 11"); a.I(f"s_cmp_eq_u32 s{S_J}, 7"); a.I("s_cselect_b32 s15, 76, s15")
        a.I(f"s_cmp_ge_u32 s{S_J}, 6"); a.I("s_cselect_b32 s16, 10, 11")
        a.I(f"s_mul_i32 s17, s{S_W}, 3"); a.I("s_add_u32 s15, s15, s17")
        a.I("s_sub_u32 s16, s16, s17")
        for u in range(3):
            a.I(f"s_add_u32 s17, s15, {u}"); a.I("s_lshr_b32 s18, s17, 1"); a.I("s_lshl_b32 s18, s18, 12"); a.I("s_and_b32 s17, s17, 1"); a.I("s_lshl_b32 s17, s17, 9")
            a.I("s_add_u32 s18, s18, s17"); a.I(f"s_mul_i32 s17, s{S_C}, {H_STRIDE:#x}"); a.I("s_add_u32 s18, s18, s17"); a.I(f"s_add_u32 s18, s18, {A_H:#x}")
            a.I(f"s_cmp_gt_u32 s16, {u}"); a.I(f"s_cselect_b32 s{S_HST+u}, s18, {OOB:#x}")
            if u > 0:
                a.I(f"s_movk_i32 s17, {u*1024}"); a.I(f"s_cselect_b32 s17, s17, {OOB:#x}"); a.I(f"v_add_u32 v{V_W1A+u-1}, s17, v{V_L16}")
        srd(a, 20, 46, 47, 1376*2)
        a.I(f"v_and_b32 v{V_T+1}, 1, v{g}"); a.I(f"v_lshlrev_b32 v{V_T+1}, 4, v{V_T+1}"); a.I(f"v_lshrrev_b32 v{V_T+2}, 1, v{g}"); a.I(f"v_lshl_add_u32 v{V_T+1}, v{V_T+2}, 3, v{V_T+1}")
        a.I("s_lshl_b32 s15, s15, 5")
        for u in range(3):
            hb = a.vm(f"buffer_load_dwordx2 {vr(V_Y2+96+2*u,2)}, v{V_T+1}, s[20:23], s15 offen offset:{32*u}")
        self.pfq = [("WQ", i) for i in range(sc.get("wq_pre", 33))]
        self.pf(sc.get("p0", 14))
        a.I(f"v_lshrrev_b32 v{V_PAIR}, 5, v0"); a.I(f"v_lshlrev_b32 v{V_PAIR}, 10, v{V_PAIR}"); a.I(f"v_and_b32 v{V_T+2}, 31, v0"); a.I(f"v_lshl_add_u32 v{V_PAIR}, v{V_T+2}, 4, v{V_PAIR}")
        a.I(f"s_lshl_b32 s15, s{S_C}, 7"); a.I(f"s_add_u32 s16, s15, {F_HALO*4096 - 128 - 32}")
        a.I(f"v_mov_b32 v{V_T+2}, s15"); a.I(f"v_mov_b32 v{V_T+3}, s16"); a.I("v_cmp_gt_u32 vcc, 8, v0")
        a.I(f"v_cndmask_b32 v{V_POLL}, v{V_T+3}, v{V_T+2}, vcc"); a.I(f"v_lshl_add_u32 v{V_POLL}, v0, 2, v{V_POLL}")
        a.I(f"v_lshlrev_b32 v{V_STS}, 2, v{m}"); a.I(f"v_add_u32 v{V_STS}, {L_STAT:#x}, v{V_STS}")
        a.I(f"v_lshlrev_b32 v{V_STV}, 4, v{g}"); a.I(f"v_add_u32 v{V_STV}, {L_STAT:#x}, v{V_STV}")
        a.I(f"s_lshl_b32 s15, s{S_W}, 10"); a.I(f"s_add_u32 s15, s15, {L_TAB:#x}")
        a.I(f"v_lshlrev_b32 v{V_TAB}, 4, v{g}"); a.I(f"v_add_u32 v{V_TAB}, s15, v{V_TAB}")
        a.I(f"v_lshlrev_b32 v{V_TABV}, 2, v{m}"); a.I(f"v_add_u32 v{V_TABV}, s15, v{V_TABV}")
        a.I(f"s_mul_i32 s15, s{S_KH}, {65536+2048}"); a.I(f"v_add_u32 v{V_KEEP}, s15, v{V_L16}")
        a.I(f"s_mul_i32 s15, s{S_KH}, {65536-2048}"); a.I("s_add_u32 s15, s15, 2048"); a.I(f"v_add_u32 v{V_SEND}, s15, v{V_L16}")
        a.I(f"v_and_b32 v{V_T+2}, 1, v{g}"); a.I(f"v_lshlrev_b32 v{V_T+2}, 2, v{V_T+2}"); a.I(f"v_lshl_add_u32 v{V_T+2}, v{m}, 3, v{V_T+2}")
        a.I(f"v_lshrrev_b32 v{V_T+3}, 1, v{g}"); a.I(f"v_lshl_add_u32 v{V_STO}, v{V_T+3}, 7, v{V_T+2}")
        a.I(f"v_mov_b32 v{V_T+3}, {OOB:#x}"); a.I("v_cmp_gt_u32 vcc, 32, v0"); a.I(f"v_cndmask_b32 v{V_STH}, v{V_T+2}, v{V_T+3}, vcc")
        a.I(f"v_lshlrev_b32 v{V_T+2}, 2, v{g}"); a.I(f"v_sub_u32 v{V_T+2}, v{V_T+2}, v{m}")
        a.I(f"v_mov_b32 v{V_T+3}, 0xf149f2ca")
        for r in range(4):
            a.I(f"v_add_u32 v{V_T+4}, {r}, v{V_T+2}")
            a.I(f"v_cmp_lt_i32 vcc, 8, v{V_T+4}"); a.I(f"v_cndmask_b32 v{V_BIAS+r}, v{V_T+3}, 0, vcc")
            a.I(f"v_add_u32 v{V_T+4}, 7, v{V_T+4}")
            a.I(f"v_cmp_gt_u32 vcc, 8, v{V_T+4}"); a.I(f"v_cndmask_b32 v{V_BIAS+4+r}, v{V_T+3}, 0, vcc")
        a.wait(vm=hx1)
        for q in range(8):
            a.I(f"v_lshlrev_b32 v{V_RES+2*q}, 16, v{V_AB+q}"); a.I(f"v_and_b32 v{V_RES+2*q+1}, 0xffff0000, v{V_AB+q}")
        a.wait(vm=hb)
        for base, lo in ((V_Y2, 0), (V_Y2 + 48, 192)):
            for q in range(6):
                a.I(f"v_pk_add_f32 {vr(base+2*q,2)}, {vr(base+2*q,2)}, {vr(base+12+2*q,2)}"); a.I(f"v_pk_add_f32 {vr(base+24+2*q,2)}, {vr(base+24+2*q,2)}, {vr(base+36+2*q,2)}")
            for q in range(6): a.I(f"v_pk_add_f32 {vr(base+2*q,2)}, {vr(base+2*q,2)}, {vr(base+24+2*q,2)}")
            for u in range(3): a.ds(f"ds_write_b128 v{V_TAB}, {vr(base+4*u)} offset:{lo+64*u}")
        for u in range(3):
            for k in range(2):
                a.I(f"v_lshlrev_b32 v{V_Y2+12+4*u+2*k}, 16, v{V_Y2+96+2*u+k}"); a.I(f"v_and_b32 v{V_Y2+12+4*u+2*k+1}, 0xffff0000, v{V_Y2+96+2*u+k}")
            a.ds(f"ds_write_b128 v{V_TAB}, {vr(V_Y2+12+4*u)} offset:{384+64*u}")
        a.wait_all(vm=False)
        self.ts()
        a.L("L_pubx")
        self.pf_last = None
        a.vm_done = 0
        last = self.publish_x(A_X, A_STX, F_X, True)
        self.pf(sc.get("x_a", 4))
        self.publish(F_X, last, halo=True)
        self.pf(sc.get("x_b", 8))
        assert True
        self.poll(F_X, halo=True, first=True)
        self.ts()
        self.pf_last = None
        rest = list(self.pfq); self.pfq = []
        a.I(f"s_lshl_b32 s15, s{S_C}, 14"); a.I(f"s_lshl_b32 s16, s{S_W}, 12"); a.I("s_add_u32 s15, s15, s16"); a.I(f"s_add_u32 s15, s15, s{S_ACT}")
        a.I(f"s_add_u32 s15, s15, {A_HALO - 16384:#x}"); a.I(f"s_cmp_lg_u32 s{S_B0}, 0"); a.I(f"s_cselect_b32 s15, {OOB:#x}, s15")
        self.dma4(15, f"s_add_u32 m0, s16, {L_HALO:#x}")
        a.I(f"s_lshl_b32 s15, s{S_C}, 16"); a.I("s_add_u32 s15, s15, s16"); a.I(f"s_add_u32 s15, s15, s{S_ACT}")
        g = {}
        for i in range(4):
            h = self.dma4(15, f"s_add_u32 m0, s16, {i*16384}")
            if i < 3: a.I("s_add_u32 s15, s15, 16384")
            if i == 0:
                a.I(f"v_lshlrev_b32 v{V_T}, 7, v0"); a.I(f"v_and_b32 v{V_T}, 0x1800, v{V_T}")
                a.I(f"v_and_b32 v{V_T+1}, 15, v0"); a.I(f"v_lshl_add_u32 v{V_T}, v{V_T+1}, 3, v{V_T}")
                a.I(f"v_lshlrev_b32 v{V_T+2}, 5, v0"); a.I(f"v_and_b32 v{V_T+2}, 0x600, v{V_T+2}"); a.I(f"v_lshl_add_u32 v{V_T+2}, v{V_T+1}, 3, v{V_T+2}")
                a.I(f"s_lshl_b32 s17, s{S_C}, 13"); a.I(f"s_lshl_b32 s18, s{S_W}, 7"); a.I("s_add_u32 s17, s17, s18"); a.I(f"s_add_u32 s17, s17, s{S_ACT}"); a.I(f"s_add_u32 s17, s17, {A_STX:#x}")
                a.I(f"s_lshl_b32 s18, s{S_C}, 11"); a.I(f"s_add_u32 s18, s18, s{S_ACT}"); a.I(f"s_add_u32 s18, s18, {A_STH - 2048:#x}")
                a.I(f"s_cmp_lg_u32 s{S_B0}, 0"); a.I(f"s_cselect_b32 s18, {OOB:#x}, s18")
                self.stats_load(V_ACC, V_T, 17, 512)
                hs = self.stats_load(V_ACC + 8, V_T + 2, 18, 128)
                g[0] = h
            if i == 1: g[4] = h
            if i == 3: g[8] = h
        self.pfq = rest + [("WQ", i) for i in range(sc.get("wq_pre", 33), 48)] + [("WO", i) for i in range(16)] + [("W1", i) for i in range(48)] \
                   + [("W2", i) for i in range(44)] + [("WQN", i) for i in range(sc.get("wq_pre", 33))]
        self.pf(len(rest) + 48 - sc.get("wq_pre", 33))
        a.wait(vm=hs)
        a.I(f"s_lshl_b32 s15, s{S_W}, 6"); a.I(f"v_add_u32 v{V_T+4}, s15, v{V_STS}")
        self.stats_finish(V_ACC, V_T + 4, 64)
        self.stats_finish(V_ACC + 8, V_STS, 0)
        a.wait_all(vm=False)
        self.kloop_n("WQ", 5, g, sc.get("q_k", {s: 2 for s in range(4, 12)}))
        self.ts()
        last = self.attention(sc.get("q_e", [6, 6, 6]))
        self.ts()
        self.pf(sc.get("o_a", 2))
        self.publish(F_O, last)
        self.pf(sc.get("o_b", 8))
        self.poll(F_O)
        self.ts()
        self.pf_last = None
        def kdma(base_off, cstride_shift_or_mul, khsteps):
            a.I(f"s_and_b32 s16, s{S_W}, 1"); a.I(f"s_mul_i32 s15, s16, {khsteps*4096}"); a.I("s_lshl_b32 s16, s16, 16")
            a.I(f"s_lshr_b32 s17, s{S_W}, 1"); a.I("s_lshl_b32 s17, s17, 12"); a.I("s_add_u32 s15, s15, s17"); a.I("s_add_u32 s16, s16, s17")
            a.I(f"s_mul_i32 s17, s{S_C}, {cstride_shift_or_mul:#x}"); a.I("s_add_u32 s15, s15, s17"); a.I(f"s_add_u32 s15, s15, s{S_ACT}"); a.I(f"s_add_u32 s55, s15, {base_off:#x}")
            a.I("s_mov_b32 s56, s16")
        kdma(A_O, 65536, 8)
        g = {}
        for i in range(4):
            h = self.dma4(55, f"s_add_u32 m0, s56, {i*8192}")
            if i < 3: a.I("s_add_u32 s55, s55, 8192")
            if i == 0: g[0] = h
            if i == 1: g[2] = h
            if i == 3: g[4] = h
        self.kloop_k("WO", 8, g, sc.get("o_k", {}))
        self.ts()
        self.reduce_add()
        last = self.publish_x(A_X1, A_STX1, F_X1, False)
        self.ts()
        self.pf(sc.get("x1_a", 6))
        self.publish(F_X1, last)
        self.pf(sc.get("x1_b", 8))
        self.poll(F_X1)
        self.ts()
        self.pf_last = None
        a.I(f"s_lshl_b32 s16, s{S_W}, 12")
        a.I(f"s_lshl_b32 s15, s{S_C}, 16"); a.I("s_add_u32 s15, s15, s16"); a.I(f"s_add_u32 s15, s15, s{S_ACT}"); a.I(f"s_add_u32 s15, s15, {A_X1:#x}")
        g = {}
        for i in range(4):
            h = self.dma4(15, f"s_add_u32 m0, s16, {i*16384}")
            if i < 3: a.I("s_add_u32 s15, s15, 16384")
            if i == 0:
                a.I(f"v_lshlrev_b32 v{V_T}, 7, v0"); a.I(f"v_and_b32 v{V_T}, 0x1800, v{V_T}")
                a.I(f"v_and_b32 v{V_T+1}, 15, v0"); a.I(f"v_lshl_add_u32 v{V_T}, v{V_T+1}, 3, v{V_T}")
                a.I(f"s_lshl_b32 s17, s{S_C}, 13"); a.I(f"s_lshl_b32 s18, s{S_W}, 7"); a.I("s_add_u32 s17, s17, s18"); a.I(f"s_add_u32 s17, s17, s{S_ACT}"); a.I(f"s_add_u32 s17, s17, {A_STX1:#x}")
                hs = self.stats_load(V_ACC, V_T, 17, 512)
                g[0] = h
            if i == 1: g[4] = h
            if i == 3: g[8] = h
        nrest = sum(1 for m_, _ in self.pfq if m_ == "W1")
        self.pf(nrest)
        a.wait(vm=hs)
        a.I(f"s_lshl_b32 s15, s{S_W}, 6"); a.I(f"v_add_u32 v{V_T+4}, s15, v{V_STS}")
        self.stats_finish(V_ACC, V_T + 4, 64)
        a.wait_all(vm=False)
        self.kloop_n("W1", 4, g, sc.get("w1_k", {s: 2 for s in range(4, 16)}))
        self.ts()
        last = self.gelu(sc.get("w1_e", 3))
        self.ts()
        nw2 = sum(1 for m_, _ in self.pfq if m_ == "W2")
        self.pf(max(nw2, sc.get("h_a", 2)))
        self.publish(F_H, last)
        self.pf(sc.get("h_b", 8))
        self.poll(F_H)
        self.ts()
        self.pf_last = None
        kdma(A_H, H_STRIDE, 21)
        g = {}
        for i in range(8):
            h = self.dma4(55, f"s_add_u32 m0, s56, {i*8192}")
            a.I("s_add_u32 s55, s55, 8192")
            if i == 0:
                g[0] = h
                srd(a, 20, 48, 49, 1024)
                a.I(f"v_lshrrev_b32 v{V_T}, 4, v0"); a.I(f"v_lshlrev_b32 v{V_T}, 4, v{V_T}")
                a.I(f"s_lshl_b32 s15, s{S_J}, 7"); a.I(f"s_lshl_b32 s16, s{S_CH}, 6"); a.I("s_add_u32 s15, s15, s16")
                hb2 = a.vm(f"buffer_load_dwordx4 {vr(V_T+4)}, v{V_T}, s[20:23], s15 offen")
            if i == 1: g[2] = h
            if i == 3: g[4] = h
            if i == 5: g[8] = h
            if i == 7: g[12] = h
        a.wait(vm=hb2)
        for q in range(4):
            a.I(f"v_lshlrev_b32 v{V_T}, 16, v{V_T+4+q}"); a.I(f"v_and_b32 v{V_T+1}, 0xffff0000, v{V_T+4+q}")
            for rho in range(2): a.I(f"v_pk_add_f32 {vr(V_RES+8*rho+2*q,2)}, {vr(V_RES+8*rho+2*q,2)}, {vr(V_T,2)}")
        def late():
            h = None
            for i in range(8, 11):
                h = self.dma4(55, f"s_add_u32 m0, s56, {(i-8)*8192}")
                if i < 10: a.I("s_add_u32 s55, s55, 8192")
            g[16] = h
        g[16] = None
        self.kloop_k("W2", 22, g, sc.get("w2_k", {}), late=(8, late))
        self.ts()
        self.reduce_add()
        self.pf(len(self.pfq) - (sc.get("wq_pre", 33) - sc.get("p0", 14)))
        a.I(f"s_cmp_lg_u32 s{S_LAYER}, 0"); a.I("s_cbranch_scc1 L_final")
        a.I(f"s_mov_b32 s{S_LAYER}, 1"); a.I(f"s_add_u32 s{S_ACT}, s{S_ACT}, {ACT_L:#x}"); a.I(f"s_mov_b32 s{S_FL}, 32768")
        a.I(f"s_mov_b32 s{S_WQ}, s{S_WQN}"); a.I(f"s_mov_b32 s{S_WQN}, {OOB:#x}")
        if self.stamps:
            for k in range(14): a.I(f"s_mov_b32 s{S_TS+16+k}, s{S_TS+k}")
        assert self.pfq == [("WQN", i) for i in range(sc.get("p0", 14), sc.get("wq_pre", 33))], self.pfq
        a.I("s_nop 4")
        a.I("s_branch L_pubx")
        a.L("L_final")
        P = V_AB
        for rho in range(2):
            for q in range(4): a.I(f"v_cvt_pk_bf16_f32 v{P+4*rho+q}, v{V_RES+8*rho+2*q}, v{V_RES+8*rho+2*q+1}")
        srd(a, 20, 50, 51, 2048*1024)
        a.vm(f"buffer_store_dwordx4 {vr(P)}, v{V_STL}, s[20:23], s53 offen")
        a.vm(f"buffer_store_dwordx4 {vr(P+4)}, v{V_STL}, s[20:23], s54 offen")
        if self.stamps:
            self.ts()
            a.I("s_memrealtime s[98:99]"); a.I("s_waitcnt lgkmcnt(0)")
            n = self.nts
            for k in range(32): a.I(f"v_mov_b32 v{V_ACC+k}, s{S_TS+k}")
            a.I(f"v_mov_b32 v{V_ACC+14}, s96"); a.I(f"v_mov_b32 v{V_ACC+15}, s98")
            a.I(f"s_lshl_b32 s15, s{S_C}, 5"); a.I(f"s_lshl_b32 s16, s{S_J}, 2"); a.I("s_add_u32 s15, s15, s16"); a.I(f"s_add_u32 s15, s15, s{S_W}"); a.I("s_lshl_b32 s15, s15, 7")
            a.I("s_add_u32 s15, s15, 0x8000000")
            a.I(f"v_mov_b32 v{V_T}, 0"); a.I("s_mov_b64 exec, 1")
            for q in range(8): a.vm(f"buffer_store_dwordx4 {vr(V_ACC+4*q)}, v{V_T}, s[4:7], s15 offen offset:{16*q}")
        a.I("s_waitcnt vmcnt(0)")
        a.L("L_abort")
        return fix_hazards(a.text(), report=True)
```

```python
from asmk import *
from layout import *

def srd(a, d, lo, hi, size):
    a.I(f"s_mov_b32 s{d}, s{lo}"); a.I(f"s_mov_b32 s{d+1}, s{hi}")
    a.I(f"s_mov_b32 s{d+2}, {size:#x}"); a.I(f"s_mov_b32 s{d+3}, 0x20000")

def gen_prep():
    a = Asm()
    a.I("s_cmp_ge_u32 s2, 304"); a.I("s_cbranch_scc1 L_p_end")
    a.I(f"s_load_dwordx4 s[4:7], s[0:1], {KA['wqkv']}")
    a.I(f"s_load_dwordx2 s[8:9], s[0:1], {KA['w1']}")
    a.I(f"s_load_dwordx2 s[10:11], s[0:1], {KA['w2']}")
    a.I(f"s_load_dwordx2 s[12:13], s[0:1], {KA['ws']}")
    a.I("v_lshrrev_b32 v1, 6, v0"); a.I("v_and_b32 v2, 63, v0")
    a.I("v_readfirstlane_b32 s14, v1")
    a.I("s_waitcnt lgkmcnt(0)")
    srd(a, 20, 12, 13, WS_SIZE)
    a.I("s_cmp_ge_u32 s2, 64"); a.I("s_cbranch_scc1 L_p_noz")
    a.I("v_lshlrev_b32 v3, 2, v0"); a.I("v_mov_b32 v4, 0"); a.I("s_lshl_b32 s15, s2, 10")
    a.I("buffer_store_dword v4, v3, s[20:23], s15 offen")
    a.L("L_p_noz")
    a.I("s_mov_b32 s27, 0x20000")
    a.I("s_cmp_lt_u32 s2, 96"); a.I("s_cbranch_scc1 L_p_q")
    a.I("s_cmp_lt_u32 s2, 184"); a.I("s_cbranch_scc1 L_p_1")
    a.I("s_cmp_lt_u32 s2, 216"); a.I("s_cbranch_scc1 L_p_o")
    a.I("s_mov_b32 s24, s10"); a.I("s_mov_b32 s25, s11"); a.I(f"s_mov_b32 s26, {1376*1024}"); a.I("s_mov_b32 s28, 1024")
    a.I("s_sub_u32 s15, s2, 216"); a.I("s_and_b32 s29, s15, 7"); a.I("s_lshr_b32 s30, s15, 3"); a.I("s_mov_b32 s31, 2")
    a.I("s_lshr_b32 s15, s14, 1"); a.I("s_lshl_b32 s16, s29, 2"); a.I("s_add_u32 s15, s15, s16"); a.I("s_mul_i32 s15, s15, 44")
    a.I("s_and_b32 s16, s14, 1"); a.I("s_add_u32 s15, s15, s16"); a.I("s_lshl_b32 s32, s15, 10"); a.I(f"s_add_u32 s32, s32, {W2:#x}")
    a.I("s_mov_b32 s33, 2048"); a.I(f"s_mov_b32 s34, {OOB:#x}"); a.I("s_mov_b32 s35, 1")
    a.I("s_branch L_p_go")
    a.L("L_p_o")
    a.I("s_mov_b32 s24, s6"); a.I("s_mov_b32 s25, s7"); a.I(f"s_mov_b32 s26, {512*1024}"); a.I("s_mov_b32 s28, 1024")
    a.I("s_sub_u32 s15, s2, 184"); a.I("s_and_b32 s29, s15, 7"); a.I("s_lshr_b32 s30, s15, 3"); a.I("s_mov_b32 s31, 2")
    a.I("s_lshr_b32 s15, s14, 1"); a.I("s_lshl_b32 s16, s29, 2"); a.I("s_add_u32 s15, s15, s16"); a.I("s_lshl_b32 s15, s15, 4")
    a.I("s_and_b32 s16, s14, 1"); a.I("s_add_u32 s15, s15, s16")
    a.I("s_lshr_b32 s16, s30, 1"); a.I("s_lshl_b32 s16, s16, 4"); a.I("s_add_u32 s15, s15, s16")
    a.I("s_lshl_b32 s32, s15, 10"); a.I(f"s_add_u32 s32, s32, {WO:#x}")
    a.I("s_mov_b32 s33, 2048"); a.I(f"s_mov_b32 s34, {OOB:#x}"); a.I("s_mov_b32 s35, 0")
    a.I("s_branch L_p_go")
    a.L("L_p_1")
    a.I("s_mov_b32 s24, s8"); a.I("s_mov_b32 s25, s9"); a.I(f"s_mov_b32 s26, {512*2752}"); a.I("s_mov_b32 s28, 2752")
    a.I("s_sub_u32 s15, s2, 96"); a.I("s_lshr_b32 s29, s15, 2"); a.I("s_and_b32 s30, s15, 3"); a.I("s_mov_b32 s31, 1")
    a.I("s_lshl_b32 s15, s29, 2"); a.I("s_add_u32 s15, s15, s14")
    a.I("s_mul_i32 s16, s15, 373"); a.I("s_lshr_b32 s16, s16, 12")
    a.I("s_add_u32 s17, s15, s16")
    a.I("s_cmp_ge_u32 s15, 76"); a.I("s_cselect_b32 s16, 8, 6"); a.I("s_add_u32 s18, s15, s16")
    a.I("s_cmp_ge_u32 s15, 66"); a.I("s_cselect_b32 s17, s18, s17")
    a.I("s_mul_i32 s16, s17, 171"); a.I("s_lshr_b32 s16, s16, 9")
    a.I("s_mul_i32 s18, s16, 45"); a.I("s_add_u32 s18, s18, s17")
    a.I("s_lshl_b32 s32, s18, 10"); a.I(f"s_add_u32 s32, s32, {W1:#x}")
    a.I("s_mov_b32 s33, 3072")
    a.I("s_mul_i32 s34, s30, 96"); a.I("s_add_u32 s34, s34, s17"); a.I("s_lshl_b32 s34, s34, 6"); a.I(f"s_add_u32 s34, s34, {CS1:#x}")
    a.I("s_cmp_ge_u32 s15, 86"); a.I(f"s_cselect_b32 s32, {OOB:#x}, s32"); a.I(f"s_cselect_b32 s34, {OOB:#x}, s34")
    a.I("s_mov_b32 s35, 0")
    a.I("s_branch L_p_go")
    a.L("L_p_q")
    a.I("s_mov_b32 s24, s4"); a.I("s_mov_b32 s25, s5"); a.I(f"s_mov_b32 s26, {512*3072}"); a.I("s_mov_b32 s28, 3072")
    a.I("s_lshr_b32 s29, s2, 2"); a.I("s_and_b32 s30, s2, 3")
    a.I("s_lshr_b32 s15, s29, 3")
    a.I("s_cmp_eq_u32 s15, 2"); a.I("s_cselect_b32 s31, 1, 0")
    a.I("s_and_b32 s16, s29, 7"); a.I("s_lshl_b32 s16, s16, 2"); a.I("s_add_u32 s16, s16, s14")
    a.I("s_mul_i32 s17, s16, 48"); a.I("s_add_u32 s17, s17, s15"); a.I("s_lshl_b32 s32, s17, 10"); a.I(f"s_add_u32 s32, s32, {WQ:#x}")
    a.I("s_mov_b32 s33, 3072")
    a.I("s_mul_i32 s17, s16, 3"); a.I("s_add_u32 s17, s17, s15")
    a.I("s_mul_i32 s34, s30, 96"); a.I("s_add_u32 s34, s34, s17"); a.I("s_lshl_b32 s34, s34, 6"); a.I(f"s_add_u32 s34, s34, {CSQ:#x}")
    a.I("s_mov_b32 s35, 0")
    a.L("L_p_go")
    a.I("v_lshrrev_b32 v3, 3, v2"); a.I("v_mul_lo_u32 v3, v3, s28"); a.I("v_and_b32 v4, 7, v2"); a.I("v_lshl_add_u32 v3, v4, 4, v3")
    a.I("s_lshl_b32 s15, s30, 2"); a.I("s_add_u32 s15, s15, s14"); a.I("s_lshl_b32 s15, s15, 5"); a.I("s_mul_i32 s15, s15, s28")
    a.I("s_lshl_b32 s16, s29, 7"); a.I("s_add_u32 s15, s15, s16")
    a.I("s_lshl_b32 s16, s28, 3")
    a.I("s_lshl_b32 s17, s14, 12")
    for q in range(4):
        a.I(f"s_add_u32 m0, s17, {q*1024}")
        a.I("s_nop 0")
        a.vm("buffer_load_dwordx4 v3, s[24:27], s15 offen lds")
        if q < 3: a.I("s_add_u32 s15, s15, s16")
    a.I("v_lshrrev_b32 v5, 4, v2"); a.I("v_lshlrev_b32 v5, 10, v5")
    a.I("v_bfe_u32 v6, v2, 2, 2"); a.I("v_lshl_add_u32 v5, v6, 7, v5")
    a.I("v_and_b32 v6, 3, v2")
    a.I("v_and_b32 v7, 1, v6"); a.I("v_lshlrev_b32 v7, 1, v7"); a.I("v_lshrrev_b32 v8, 1, v6"); a.I("v_add_u32 v7, v7, v8")
    a.I("v_lshlrev_b32 v8, 1, v6")
    a.I("s_lshl_b32 s15, s14, 2")
    a.I("s_lshr_b32 s16, s14, 1"); a.I("s_lshl_b32 s16, s16, 3"); a.I("s_and_b32 s17, s14, 1"); a.I("s_add_u32 s16, s16, s17")
    a.I("s_cmp_eq_u32 s31, 2"); a.I("s_cselect_b32 s15, s16, s15"); a.I("s_cselect_b64 s[36:37], -1, 0")
    a.I("s_cmp_eq_u32 s31, 1"); a.I("s_cselect_b64 s[38:39], -1, 0")
    a.I("v_cndmask_b32 v6, v6, v7, s[38:39]"); a.I("v_cndmask_b32 v6, v6, v8, s[36:37]")
    a.I("v_add_u32 v6, s15, v6"); a.I("v_lshl_add_u32 v5, v6, 3, v5")
    a.I("v_lshlrev_b32 v9, 4, v2")
    a.I("v_mov_b32 v12, 0x3f803f80"); a.I("v_mov_b32 v13, v12"); a.I("v_mov_b32 v14, v12"); a.I("v_mov_b32 v15, v12")
    a.wait_all(); a.I("s_barrier")
    for ss in range(4):
        a.ds(f"ds_read_b64_tr_b16 v[{16+4*ss}:{17+4*ss}], v5 offset:{ss*4096}")
        a.ds(f"ds_read_b64_tr_b16 v[{18+4*ss}:{19+4*ss}], v5 offset:{ss*4096+512}")
    a.wait_all()
    for ss in range(4):
        a.I("s_lshl_b32 s15, s30, 2"); a.I(f"s_add_u32 s15, s15, {ss}")
        a.I("s_mul_i32 s16, s15, s33")
        a.I("s_cmp_eq_u32 s35, 0"); a.I(f"s_cbranch_scc1 L_p_nw2_{ss}")
        a.I("s_cmp_lt_u32 s15, 22"); a.I(f"s_cbranch_scc1 L_p_nw2_{ss}")
        a.I(f"s_add_u32 s16, s16, {88*1024 - 21*2048}")
        a.I("s_cmp_eq_u32 s15, 43"); a.I(f"s_cselect_b32 s16, {88*1024}, s16")
        a.L(f"L_p_nw2_{ss}")
        a.I("s_add_u32 s16, s16, s32")
        a.vm(f"buffer_store_dwordx4 v[{16+4*ss}:{19+4*ss}], v9, s[20:23], s16 offen")
        a.I(f"v_mfma_f32_16x16x32_bf16 v[32:35], v[{16+4*ss}:{19+4*ss}], v[12:15], {'0' if ss == 0 else 'v[32:35]'}")
    a.I("v_and_b32 v10, 15, v2"); a.I("v_and_b32 v11, 48, v2")
    a.I("v_cmp_eq_u32 vcc, 0, v10"); a.I("s_and_saveexec_b64 s[40:41], vcc")
    a.I("s_nop 7")
    a.vm("buffer_store_dwordx4 v[32:35], v11, s[20:23], s34 offen")
    a.wait_all()
    a.L("L_p_end")
    return fix_hazards(a.text())
```

```python
FLAGS = 0x0
WQ  = 0x100000
WO  = 0x280000
W1  = 0x300000
W2  = 0x480000
CSQ = 0x600000
CS1 = 0x610000
ACT = 0x1000000
ACT_L = 0x1000000
A_X, A_O, A_X1, A_H, A_HALO, A_STX, A_STX1, A_STH = 0x0, 0x200000, 0x400000, 0x600000, 0xC00000, 0xD00000, 0xD40000, 0xD80000
H_STRIDE = 0x2C000
WS_SIZE = 0x10000000
OOB = 0x40000000
F_X, F_O, F_X1, F_H, F_HALO = 0, 1, 2, 3, 4
def flag_off(layer, kind, cluster=0): return FLAGS + ((layer * 8 + kind) * 32 + cluster) * 128
KA = dict(x=0, wqkv=8, wo=16, bx=24, w1=32, b1=40, w2=48, b2=56, out=64, dbg=72, ws=80)
def w1_start(j): return 11 * j if j < 6 else 66 + 10 * (j - 6)
def w1_n(j): return 11 if j < 6 else 10
```

```python
import sys
sys.path.insert(0, "gen")
from gen_p import gen_prep
import gen_main
NAME = "interleave_layers__sliding_local_dilated__dense_activation_gelu__prompt"
def kd(name, vgpr, accum):
    return f""".p2align 6
.amdhsa_kernel {name}
  .amdhsa_next_free_vgpr {vgpr}
  .amdhsa_next_free_sgpr 102
  .amdhsa_accum_offset {accum}
  .amdhsa_group_segment_fixed_size 0
  .amdhsa_kernarg_size 88
  .amdhsa_user_sgpr_count 2
  .amdhsa_user_sgpr_kernarg_segment_ptr 1
  .amdhsa_system_sgpr_workgroup_id_x 1
.end_amdhsa_kernel
"""
def kern(name, body):
    return f".globl {name}\n.p2align 8\n.type {name},@function\n{name}:\n{body}\n    s_endpgm\n"
def build_text(stamps=False, sched=None):
    m = gen_main.Main(stamps=stamps, sched=sched)
    body = m.gen()
    t = f"; @launch kernel=prep_kernel grid=(304,1,1) block=(256,1,1) lds=16384\n"
    t += f"; @launch kernel={NAME}_kernel grid=(256,1,1) block=(256,1,1) lds={gen_main.LDS_BYTES}\n"
    t += '.amdgcn_target "amdgcn-amd-amdhsa--gfx950"\n.text\n'
    t += kern("prep_kernel", gen_prep()) + kern(NAME + "_kernel", body)
    t += '.section .rodata,"a"\n' + kd("prep_kernel", 64, 64) + kd(NAME + "_kernel", 512, 256)
    return t
if __name__ == "__main__":
    out = sys.argv[1] if len(sys.argv) > 1 else f"cdna_kernels/{NAME}.s"
    open(out, "w").write(build_text())
    print("written", out)
```
